```python
import torch

def _softmax(x, axis=-1):
    return torch.softmax(x, dim=axis)
def _gelu(x):
    return torch.nn.functional.gelu(x, approximate="tanh")
def _silu(x):
    return torch.nn.functional.silu(x)
def _sigmoid(x):
    return torch.sigmoid(x)
def _layernorm(x, axis=-1, eps=1e-5):
    m = x.mean(dim=axis, keepdim=True)
    v = x.var(dim=axis, keepdim=True, unbiased=False)
    return (x - m) / torch.sqrt(v + eps)
def _scatter_add(tgt, idx, src, axis=0):
    return tgt.clone().index_add_(axis, idx, src)
def _segment_sum(src, seg, n):
    out = torch.zeros((n,) + src.shape[1:], dtype=src.dtype)
    return out.index_add_(0, seg, src)
def _pad(x, pw):
    flat = tuple(v for pair in reversed(pw) for v in pair)
    return torch.nn.functional.pad(x, flat)

kernel_name = 'gated_mix__spectral_gfnet__mixer_token_mlp__prompt'

def setup_inputs():

    _w = (lambda a: (lambda t: t.to(torch.bfloat16) if t.is_floating_point() else t)(torch.as_tensor(a)))
    def _A_setup():
        B, S, D = 1, 2048, 576
        Df = D // 2 + 1
        return {
            "x": _w((lambda *s: torch.randn(*s, dtype=torch.bfloat16) * 0.05)(B, S, D)),
            "w_r": _w((lambda *s: torch.randn(*s, dtype=torch.bfloat16) * 1.6)(S, Df) * 0.02),
            "w_i": _w((lambda *s: torch.randn(*s, dtype=torch.bfloat16) * 1.6)(S, Df) * 0.02),
        }
    _A_in = _A_setup()

    def _B_setup():
        B, S, D, F = 1, 2048, 576, 4608
        return {
            "x": _w((lambda *s: torch.randn(*s, dtype=torch.bfloat16) * 0.05)(B, S, D)),
            "w1": _w((lambda *s: torch.randn(*s, dtype=torch.bfloat16) * 0.2)(S, F) * (S ** -0.5)),
            "b1": _w((lambda *s: torch.randn(*s, dtype=torch.bfloat16) * 3.2)(F) * 0.02),
            "w2": _w((lambda *s: torch.randn(*s, dtype=torch.bfloat16) * 0.05)(F, S) * (F ** -0.5)),
            "b2": _w((lambda *s: torch.randn(*s, dtype=torch.bfloat16) * 0.1)(S) * 0.02),
        }
    _B_in = _B_setup()

    return {
        "A_x": _A_in["x"],
        "A_w_r": _A_in["w_r"],
        "A_w_i": _A_in["w_i"],
        "B_x": _B_in["x"],
        "B_w1": _B_in["w1"],
        "B_b1": _B_in["b1"],
        "B_w2": _B_in["w2"],
        "B_b2": _B_in["b2"],
        "gate_w": _w((lambda *s: torch.randn(*s, dtype=torch.bfloat16) * 0.05)(576) * 16.0),
    }

def reference(A_x, A_w_r, A_w_i, B_x, B_w1, B_b1, B_w2, B_b2, gate_w):
    def _A_ref(x, w_r, w_i):
        B, S, D = x.shape
        X = (lambda x, axes=(-2,-1): torch.fft.rfft2(x.float(), dim=axes))(x, axes=(-2, -1))
        W = w_r + 1j * w_i
        X = X * W
        y = (lambda x, s, axes=(-2,-1): torch.fft.irfft2(x, s=s, dim=axes).to(torch.bfloat16))(X, (S, D), axes=(-2, -1))
        return y

    def _B_ref(x, w1, b1, w2, b2):
        B, S, D = x.shape
        h = _layernorm(x, axis=-1)
        u = torch.einsum("bsd,sf->bdf", h, w1) + b1
        u = _gelu(u)
        y = torch.einsum("bdf,fs->bds", u, w2) + b2
        return (lambda x, *d: x.permute(*d))(y, 0, 2, 1)

    x = A_x
    g = _sigmoid((x * gate_w).sum(-1, keepdims=True))
    a = _A_ref(x, A_w_r, A_w_i)
    b = _B_ref(x, B_w1, B_b1, B_w2, B_b2)
    return g * a + (1 - g) * b
```

```python
import re, struct

def f2u(x):
    return struct.unpack('<I', struct.pack('<f', x))[0]

def flit(x):
    return '0x%08x' % f2u(x)

TRANS = ('v_exp_f32','v_log_f32','v_rcp_f32','v_rsq_f32','v_sqrt_f32','v_sin_f32','v_cos_f32',
         'v_exp_f16','v_rcp_f16')

def parse_regs(tok):
    t = tok.strip()
    t = t.lstrip('-')
    m = re.match(r'^abs\((.*)\)$', t)
    if m: t = m.group(1)
    t = t.strip('|')
    m = re.match(r'^([vas])\[(\d+):(\d+)\]$', t)
    if m:
        return {(m.group(1), i) for i in range(int(m.group(2)), int(m.group(3)) + 1)}
    m = re.match(r'^([vas])(\d+)$', t)
    if m:
        return {(m.group(1), int(m.group(2)))}
    if t in ('vcc', 'vcc_lo', 'vcc_hi'): return {('vcc', 0)}
    if t in ('exec', 'exec_lo', 'exec_hi'): return {('exec', 0)}
    if t == 'm0': return {('m0', 0)}
    return set()

class Ins:
    def __init__(self, text):
        self.text = text
        body = text.split(';')[0].strip()
        self.label = body.endswith(':')
        self.directive = body.startswith('.') and not self.label
        self.empty = (body == '')
        self.op = ''
        self.kind = None
        self.w = set(); self.r = set()
        self.mf_a = set(); self.mf_c = set(); self.passes = 0
        self.states = 1
        self.dpp = False; self.lds_dma = False; self.wide_store = set()
        self.opsel = False
        if self.label or self.directive or self.empty:
            self.states = 0
            return
        parts = body.split(None, 1)
        op = parts[0]; self.op = op
        rest = parts[1] if len(parts) > 1 else ''
        ops = []; depth = 0; cur = ''
        for ch in rest:
            if ch == '[': depth += 1
            if ch == ']': depth -= 1
            if ch == ',' and depth == 0:
                ops.append(cur.strip()); cur = ''
            else: cur += ch
        if cur.strip(): ops.append(cur.strip())
        mods = ''
        if ops:
            last = ops[-1].split(None, 1)
            if len(last) > 1:
                ops[-1] = last[0]; mods = last[1]
        self.ops = ops; self.mods = mods
        R = [parse_regs(o) for o in ops]
        base = re.sub(r'_(e32|e64|dpp|sdwa)$', '', op)
        self.base = base
        if op == 's_nop':
            self.kind = 'nop'; self.states = int(ops[0], 0) + 1
        elif op.startswith('v_mfma'):
            self.kind = 'mfma'
            self.w = R[0]; self.mf_a = R[1] | R[2]; self.mf_c = R[3]; self.r = self.mf_a | self.mf_c
            self.passes = 8 if '32x32' in op else 4
        elif op.startswith('v_'):
            self.kind = 'valu'
            self.dpp = any(k in mods for k in ('row_', 'quad_perm', 'wave_', 'bcast'))
            if 'op_sel' in mods and base not in ('v_pk_mul_f32','v_pk_add_f32','v_pk_fma_f32','v_fma_mix_f32'): self.opsel = True
            if 'dst_sel' in mods: self.opsel = True
            if base.startswith('v_permlane') and 'swap' in base:
                self.w = R[0] | R[1]; self.r = R[0] | R[1]
            elif base.startswith('v_cmpx'):
                self.w = R[0] | {('exec', 0)}; self.r = set().union(*R[1:])
            elif base.startswith('v_add_co') or base.startswith('v_sub_co') or base.startswith('v_addc_co') or base.startswith('v_subb_co'):
                self.w = R[0] | R[1]; self.r = set().union(*R[2:])
            else:
                self.w = R[0]; self.r = set().union(*R[1:]) if len(R) > 1 else set()
                if base in ('v_fmac_f32', 'v_writelane_b32', 'v_pk_fmac_f16', 'v_dot2c_f32_bf16') or self.dpp or self.opsel:
                    self.r |= R[0]
        elif op.startswith('ds_'):
            self.kind = 'ds'
            if op.startswith('ds_read') or op.startswith('ds_swizzle') or 'permute' in op:
                self.w = R[0]; self.r = set().union(*R[1:])
                if 'd16' in op: self.r |= R[0]
            else:
                self.r = set().union(*R)
        elif op.startswith('buffer_') or op.startswith('global_'):
            self.kind = 'vmem'
            allm = ' ' + mods + ' '
            if op.startswith('buffer_load') and ' lds ' in allm:
                self.lds_dma = True; self.r = set().union(*R) | {('m0', 0)}
            elif op.startswith('global_load_lds'):
                self.lds_dma = True; self.r = set().union(*R) | {('m0', 0)}
            elif 'load' in op:
                self.w = R[0]; self.r = set().union(*R[1:])
                if 'd16' in op: self.r |= R[0]
            elif op.startswith('buffer_store'):
                self.r = set().union(*R)
                if 'x3' in op or 'x4' in op: self.wide_store = R[0]
            elif op.startswith('global_store'):
                self.r = set().union(*R)
                if 'x3' in op or 'x4' in op: self.wide_store = R[1]
            else:
                self.r = set().union(*R) if R else set()
                if ' sc0 ' in allm and 'atomic' in op: self.w = R[0]
        elif op.startswith('s_'):
            self.kind = 'salu'
            if op.startswith('s_cmp') or op.startswith('s_cbranch') or op in ('s_branch', 's_waitcnt', 's_barrier', 's_endpgm', 's_setprio', 's_sleep'):
                self.r = set().union(*R) if R else set()
            else:
                self.w = R[0] if R else set()
                self.r = set().union(*R[1:]) if len(R) > 1 else set()
                if 'saveexec' in op: self.w |= {('exec', 0)}
        else:
            raise ValueError('unknown instruction: ' + text)

def isv(s): return {x for x in s if x[0] in ('v', 'a')}
def iss(s): return {x for x in s if x[0] in ('s', 'vcc')}

def need(p, c):
    n = 0
    if p.kind == 'valu':
        wv = isv(p.w); ws = iss(p.w)
        if c.kind == 'mfma' and wv & c.r: n = max(n, 2)
        if c.kind == 'valu':
            if p.base in TRANS and (wv & c.r): n = max(n, 1)
            if p.opsel and (wv & (c.r | c.w)): n = max(n, 1)
            if c.dpp and (wv & c.r): n = max(n, 2)
            if c.base.startswith('v_permlane') and (wv & c.r): n = max(n, 2)
            if c.base in ('v_readfirstlane_b32', 'v_readlane_b32') and (wv & c.r): n = max(n, 1)
            if ws & c.r:
                n = max(n, 4 if c.base in ('v_readlane_b32', 'v_writelane_b32') else 2)
            if ('exec', 0) in p.w:
                if c.dpp: n = max(n, 5)
                if c.base in ('v_readfirstlane_b32', 'v_readlane_b32', 'v_writelane_b32') or c.base.startswith('v_permlane'): n = max(n, 4)
                if ('exec', 0) in c.r: n = max(n, 2)
        if p.base.startswith('v_dot'):
            if c.kind in ('valu', 'vmem', 'ds', 'mfma') and (wv & (c.r | c.w)):
                ok = False
                if c.base == p.base and len(c.ops) == 4:
                    ab = parse_regs(c.ops[1]) | parse_regs(c.ops[2])
                    if not (wv & ab): ok = True
                if not ok: n = max(n, 3)
        if c.kind == 'vmem' and (ws & c.r): n = max(n, 5)
        if c.kind == 'mfma' and ('exec', 0) in p.w: n = max(n, 4)
        if c.kind == 'salu' and (ws & c.r): n = max(n, 1)
    if p.kind == 'mfma':
        big = 8 if p.passes == 4 else 12
        if c.kind == 'mfma':
            if p.w & c.mf_a: n = max(n, big)
            if p.w & c.mf_c:
                if not (p.w == c.mf_c and p.passes == c.passes): n = max(n, big - 2)
            elif p.w & c.w: n = max(n, big)
        elif c.kind in ('valu', 'vmem', 'ds'):
            if p.w & (c.r | c.w): n = max(n, big)
            if c.kind == 'valu' and (p.mf_c & c.w): n = max(n, 3 if p.passes == 4 else 7)
    if p.kind == 'salu' and ('m0', 0) in p.w and c.lds_dma: n = max(n, 1)
    if p.kind == 'vmem' and p.wide_store and (p.wide_store & c.w):
        n = max(n, 2 if c.kind in ('valu', 'mfma') else 1)
    return n

class Asm:
    def __init__(self):
        self.lines = []
        self.uid = 0
    def __call__(self, s):
        for l in s.split('\n'):
            self.lines.append(l.strip())
    def label(self, name):
        self.lines.append(name + ':')
    def newlabel(self, p='L'):
        self.uid += 1
        return '%s_%d' % (p, self.uid)
    def finish(self):
        ins = [Ins(l) for l in self.lines]
        out = []
        W = 14
        def required(hist, c):
            dist = 0; req = 0
            for p in reversed(hist):
                if p.states == 0: continue
                n = need(p, c)
                if n > dist: req = max(req, n - dist)
                dist += p.states
                if dist >= W: break
            return req
        for c in ins:
            if c.states and c.kind != 'nop':
                req = required(out[-40:], c)
                if req > 0:
                    out.append(Ins('s_nop %d' % (req - 1)))
            out.append(c)
        labels = {}
        for i, c in enumerate(out):
            if c.label: labels[c.text.split(';')[0].strip()[:-1]] = i
        fix = {}
        for i, c in enumerate(out):
            if c.op.startswith('s_cbranch') or c.op == 's_branch':
                t = labels[c.ops[0]]
                hist = out[max(0, i - 40):i + 1]
                worst = 0
                seq = list(hist)
                d = 0
                for j in range(t, min(t + 40, len(out))):
                    cc = out[j]
                    if cc.states == 0: continue
                    if cc.kind != 'nop':
                        worst = max(worst, required(seq, cc))
                    seq.append(cc)
                    d += cc.states
                    if d >= W or cc.op in ('s_branch', 's_endpgm'): break
                if worst: fix[i] = worst
        res = []
        for i, c in enumerate(out):
            if i in fix:
                res.append('    s_nop %d' % (fix[i] - 1))
            if c.label or c.directive: res.append(c.text)
            elif c.empty: res.append(c.text)
            else: res.append('    ' + c.text)
        return '\n'.join(res) + '\n'

def vr(b, n=1, k='v'):
    return '%s%d' % (k, b) if n == 1 else '%s[%d:%d]' % (k, b, b + n - 1)
def ar(b, n=1): return vr(b, n, 'a')
def sr(b, n=1): return vr(b, n, 's')

class Alloc:
    def __init__(self, start, limit):
        self.p = start; self.limit = limit; self.hi = start
    def get(self, n=1, align=1):
        if n >= 2 and align < 2: align = 2
        self.p = (self.p + align - 1) // align * align
        b = self.p; self.p += n
        assert self.p <= self.limit, 'out of registers'
        self.hi = max(self.hi, self.p)
        return b
    def mark(self): return self.p
    def release(self, m): self.p = m
```

```python
from asmlib import *
S = 2048; D = 576; F = 4608
WS_HT = 0x0000000
WS_G  = 0x0300000
WS_X1 = 0x0400000
X1_BYTES = 38 * 65536
WS_UT = 0x0800000
UT_BYTES = 162 * 36 * 1024
WS_ZT = 0x0E00000
WS_PT = 0x1100000
K_X, K_WR, K_WI, K_W1, K_B1, K_W2, K_B2, K_GW, K_OUT, K_DBG, K_WS = 0, 8, 16, 32, 40, 48, 56, 64, 72, 80, 88

def srd(a, dst, base, nbytes, off=0):
    if off:
        a('s_add_u32 s%d, s%d, 0x%x' % (dst, base, off))
        a('s_addc_u32 s%d, s%d, 0' % (dst + 1, base + 1))
    else:
        if dst != base:
            a('s_mov_b32 s%d, s%d' % (dst, base))
            a('s_mov_b32 s%d, s%d' % (dst + 1, base + 1))
    a('s_mov_b32 s%d, 0x%x' % (dst + 2, nbytes))
    a('s_mov_b32 s%d, 0x20000' % (dst + 3))

def kernel_header(name):
    return ('.globl %s\n.p2align 8\n.type %s,@function\n%s:\n' % (name, name, name))

def kernel_desc(name, vgpr, accum, sgpr=96):
    return ('.p2align 6\n.amdhsa_kernel %s\n  .amdhsa_next_free_vgpr %d\n  .amdhsa_next_free_sgpr %d\n'
            '  .amdhsa_accum_offset %d\n  .amdhsa_group_segment_fixed_size 0\n  .amdhsa_kernarg_size 96\n'
            '  .amdhsa_user_sgpr_count 2\n  .amdhsa_user_sgpr_kernarg_segment_ptr 1\n'
            '  .amdhsa_system_sgpr_workgroup_id_x 1\n.end_amdhsa_kernel\n' % (name, vgpr, sgpr, accum))

MFMA = 'v_mfma_f32_16x16x32_bf16'
```

```python
from common import *
from gemm import S_WAVE

L_X = 0; L_W = 65536; L_F = 131072; L_T1 = 131072 + 16384; L_T2 = L_T1 + 8192
FFT_LDS = 163840

def weave(a, m, f):
    m = list(m); f = list(f)
    nm = len(m); nf = len(f); k = 0
    for i, x in enumerate(m):
        a(x)
        upto = (i + 1) * nf // nm
        while k < upto:
            a(f[k]); k += 1

def gen_fft(a, name):
    W = S_WAVE
    a('s_mul_i32 s35, s33, 5')
    a('s_add_u32 s35, s35, s34')
    a('s_sub_u32 s35, s35, 27')
    a('s_cmp_ge_u32 s35, 37')
    a('s_cbranch_scc1 %s_end' % name)
    a('s_load_dwordx2 s[8:9], s[0:1], %d' % K_WR)
    a('s_load_dwordx2 s[12:13], s[0:1], %d' % K_WI)
    a('s_load_dwordx2 s[52:53], s[0:1], %d' % K_WS)
    V = Alloc(1, 168)
    bT = V.get(); bW = V.get(); tmp = V.get(4)
    ACC = [V.get(32, 4), V.get(32, 4)]
    P = [V.get(24, 4), V.get(24, 4)]
    X = V.get(32, 4)
    TW = V.get(16, 4)
    C64 = 0; S64 = 32; C32 = 64; S32 = 72; N32 = 80
    lane = P[0]; g = P[0] + 1; n = P[0] + 2; t0 = P[0] + 3; t1 = P[0] + 4; xa = P[0] + 5
    rho_n = P[0] + 9; rho_g = P[0] + 10; nf = P[0] + 11
    a('v_and_b32 v%d, 63, v0' % lane)
    a('v_lshrrev_b32 v%d, 4, v%d' % (g, lane))
    a('v_and_b32 v%d, 15, v%d' % (n, lane))
    a('s_and_b32 s36, s%d, 3' % W)
    a('s_lshl_b32 s36, s36, 2')
    a('v_xor_b32 v%d, s36, v%d' % (t0, lane))
    a('v_lshlrev_b32 v%d, 4, v%d' % (xa, t0))
    for e in range(1, 4):
        a('v_xor_b32 v%d, %d, v%d' % (xa + e, 16 * e, xa))
    a('s_lshr_b32 s37, s%d, 2' % W)
    a('s_and_b32 s38, s%d, 2' % W)
    a('s_lshl_b32 s38, s38, 4')
    a('s_and_b32 s39, s%d, 1' % W)
    a('s_lshl_b32 s39, s39, 2')
    a('s_add_u32 s38, s38, s39')
    a('s_lshl_b32 s37, s37, 4')
    a('v_lshl_add_u32 v%d, v%d, 3, s38' % (rho_g, g))
    a('v_add_u32 v%d, s37, v%d' % (t1, n))
    a('v_lshl_add_u32 v%d, v%d, 5, v%d' % (t0, rho_g, t1))
    a('v_mul_u32_u24 v%d, 578, v%d' % (t0, t0))
    a('s_lshl_b32 s39, s35, 4')
    a('s_cmp_eq_u32 s35, 36')
    a('s_cselect_b32 s39, 562, s39')
    a('s_cselect_b32 s54, 7, s%d' % W)
    a('s_lshl_b32 s55, s35, 16')
    a('s_lshl_b32 s56, s%d, 13' % W)
    a('s_add_u32 s55, s55, s56')
    a('s_waitcnt lgkmcnt(0)')
    srd(a, 8, 8, S * 289 * 2)
    srd(a, 12, 12, S * 289 * 2)
    srd(a, 40, 52, X1_BYTES, WS_X1)
    for e in range(8):
        a('s_add_u32 m0, s56, %d' % (L_X + 1024 * e))
        a('buffer_load_dwordx4 v%d, s[40:43], s55 offen lds' % (xa + e % 4))
        a('s_add_u32 s55, s55, 1024')
    WG = ACC[1]
    for i in range(4):
        a('buffer_load_dwordx4 %s, v%d, s[8:11], s39 offen' % (vr(WG + 4 * i, 4), t0))
        a('buffer_load_dwordx4 %s, v%d, s[12:15], s39 offen' % (vr(WG + 16 + 4 * i, 4), t0))
        if i < 3: a('s_add_u32 s39, s39, %d' % (578 * 32))
    srd(a, 44, 52, S * 4, WS_G + 8192)
    srd(a, 48, 52, 576 * 4096, WS_ZT)
    a('v_lshlrev_b32 v%d, 4, v%d' % (bT, lane))
    a('s_lshl_b32 s56, s54, 13')
    a('s_add_u32 s56, s56, %d' % L_W)
    a('v_add_u32 v%d, s56, v%d' % (bW, bT))
    wW = P[1] + 23
    a('s_lshl_b32 s56, s%d, 10' % W)
    a('s_add_u32 s57, s56, %d' % L_W)
    a('v_add_u32 v%d, s57, v%d' % (wW, bT))
    a('v_add_u32 v%d, %d, v%d' % (bT, L_F, bT))
    tw_w = P[0] + 12; f_w = P[0] + 13
    a('v_add_u32 v%d, s56, v%d' % (tw_w, bT))
    a('v_add_u32 v%d, s56, v%d' % (f_w, tw_w))
    A0 = ACC[0]
    ang = A0; cc = A0 + 8; ss = A0 + 16; pk = A0 + 24
    a('v_cvt_f32_u32 v%d, v%d' % (t1, t1))
    a('v_mul_f32 v%d, %s, v%d' % (t1, flit(1.0 / 2048), t1))
    a('v_cvt_f32_u32 v%d, v%d' % (t0, rho_g))
    a('v_mul_f32 v%d, v%d, v%d' % (ang, t0, t1))
    for i in range(1, 4):
        a('v_add_f32 v%d, v%d, v%d' % (ang + i, ang + i - 1, t1))
    a('v_lshrrev_b32 v%d, 2, v%d' % (t0, n))
    a('v_lshlrev_b32 v%d, 2, v%d' % (t0, t0))
    a('v_add_u32 v%d, v%d, v%d' % (rho_n, t0, n))
    a('v_add_u32 v%d, s38, v%d' % (t0, rho_n))
    a('v_cvt_f32_u32 v%d, v%d' % (t0, t0))
    a('v_mul_f32 v%d, %s, v%d' % (t0, flit(1.0 / 2048), t0))
    a('v_lshl_add_u32 v%d, v%d, 2, s37' % (t1, g))
    a('v_cvt_f32_u32 v%d, v%d' % (t1, t1))
    a('v_mul_f32 v%d, v%d, v%d' % (ang + 4, t0, t1))
    for i in range(1, 4):
        a('v_add_f32 v%d, v%d, v%d' % (ang + 4 + i, ang + 3 + i, t0))
    for i in range(8):
        a('v_cos_f32 v%d, v%d' % (cc + i, ang + i)); a('v_sin_f32 v%d, v%d' % (ss + i, ang + i))
    for i in range(8):
        a('v_cvt_pk_f16_f32 v%d, v%d, v%d' % (pk + i, cc + i, ss + i))
    a('ds_write_b128 v%d, %s offset:%d' % (tw_w, vr(pk, 4), L_T1 - L_F))
    a('ds_write_b128 v%d, %s offset:%d' % (tw_w, vr(pk + 4, 4), L_T2 - L_F))
    a('s_and_b32 s56, s%d, 4' % W)
    a('s_lshl_b32 s56, s56, 3')
    a('s_and_b32 s57, s%d, 2' % W)
    a('s_lshl_b32 s57, s57, 1')
    a('s_add_u32 s56, s56, s57')
    a('s_and_b32 s57, s%d, 1' % W)
    a('s_lshl_b32 s57, s57, 5')
    a('v_add_u32 v%d, s56, v%d' % (t0, rho_n))
    a('v_cvt_f32_u32 v%d, v%d' % (t0, t0))
    a('v_mul_f32 v%d, %s, v%d' % (t0, flit(1.0 / 64), t0))
    a('v_lshl_add_u32 v%d, v%d, 3, s57' % (t1, g))
    a('v_cvt_f32_u32 v%d, v%d' % (t1, t1))
    a('v_mul_f32 v%d, v%d, v%d' % (ang, t0, t1))
    for j in range(1, 8):
        a('v_add_f32 v%d, v%d, v%d' % (ang + j, ang + j - 1, t0))
    for j in range(8):
        a('v_cos_f32 v%d, v%d' % (cc + j, ang + j)); a('v_sin_f32 v%d, v%d' % (ss + j, ang + j))
    pk2 = TW
    for p in range(4):
        a('v_cvt_pk_bf16_f32 v%d, v%d, v%d' % (pk2 + p, cc + 2 * p, cc + 2 * p + 1))
        a('v_cvt_pk_bf16_f32 v%d, v%d, v%d' % (pk2 + 4 + p, ss + 2 * p, ss + 2 * p + 1))
    a('ds_write_b128 v%d, %s' % (f_w, vr(pk2, 4)))
    a('ds_write_b128 v%d, %s offset:1024' % (f_w, vr(pk2 + 4, 4)))
    a('v_cvt_f32_u32 v%d, v%d' % (t0, n))
    a('v_mul_f32 v%d, %s, v%d' % (t0, flit(1.0 / 32), t0))
    a('v_lshlrev_b32 v%d, 2, v%d' % (t1, g))
    a('v_cvt_f32_u32 v%d, v%d' % (t1, t1))
    a('v_mul_f32 v%d, v%d, v%d' % (ang, t0, t1))
    for j in range(1, 4):
        a('v_add_f32 v%d, v%d, v%d' % (ang + j, ang + j - 1, t0))
    a('v_mul_f32 v%d, %s, v%d' % (t0, flit(16.0), t0))
    for j in range(4):
        a('v_add_f32 v%d, v%d, v%d' % (ang + 4 + j, ang + j, t0))
    for j in range(8):
        a('v_cos_f32 v%d, v%d' % (cc + j, ang + j)); a('v_sin_f32 v%d, v%d' % (ss + j, ang + j))
    q = X
    for p in range(4):
        a('v_cvt_pk_bf16_f32 v%d, v%d, v%d' % (q + p, cc + 2 * p, cc + 2 * p + 1))
        a('v_cvt_pk_bf16_f32 v%d, v%d, -v%d' % (q + 4 + p, cc + 2 * p, cc + 2 * p + 1))
        a('v_cvt_pk_bf16_f32 v%d, v%d, v%d' % (q + 8 + p, ss + 2 * p, ss + 2 * p + 1))
        a('v_cvt_pk_bf16_f32 v%d, v%d, -v%d' % (q + 12 + p, ss + 2 * p, ss + 2 * p + 1))
        a('v_cvt_pk_bf16_f32 v%d, -v%d, -v%d' % (q + 16 + p, ss + 2 * p, ss + 2 * p + 1))
        a('v_cvt_pk_bf16_f32 v%d, -v%d, v%d' % (q + 20 + p, ss + 2 * p, ss + 2 * p + 1))
    for p in range(24):
        a('v_accvgpr_write_b32 a%d, v%d' % (C32 + p, q + p))
    a('v_xor_b32 v%d, s%d, v%d' % (t0, W, n))
    a('v_lshlrev_b32 v%d, 4, v%d' % (t0, t0))
    a('v_lshl_add_u32 v%d, v%d, 8, v%d' % (t0, g, t0))
    a('v_lshl_add_u32 v%d, v%d, 10, v%d' % (t0, rho_n, t0))
    a('v_xor_b32 v%d, 128, v%d' % (t1, t0))
    a('v_lshlrev_b32 v0, 3, v%d' % g)
    a('v_lshl_add_u32 v0, v%d, 6, v0' % n)
    a('s_waitcnt vmcnt(8) lgkmcnt(0)')
    a('s_barrier')
    for t in range(4):
        off = L_X + (32 * (t // 2) + 4 * (t % 2)) * 1024
        a('ds_read_b128 %s, v%d offset:%d' % (vr(X + 4 * t, 4), t0, off))
        a('ds_read_b128 %s, v%d offset:%d' % (vr(X + 16 + 4 * t, 4), t1, off))
    def rd_tab(base, u):
        return lambda t: 'ds_read_b128 %s, v%d offset:%d' % (vr(TW + 4 * t, 4), bT, base - L_F + (4 * u + t) * 1024)
    def rd_w(u):
        return lambda t: 'ds_read_b128 %s, v%d offset:%d' % (vr(TW + 4 * t, 4), bW, (4 * u + t) * 1024)
    for t in range(4): a(rd_tab(L_T1, 0)(t))
    a('s_waitcnt lgkmcnt(4)')
    def M14(u, inv):
        A = ACC[u]; m = []
        sp, sn = (N32, S32) if inv else (S32, N32)
        for t in range(4):
            m.append('%s %s, %s, %s, 0' % (MFMA, vr(A + 4 * t, 4), vr(X + 4 * t, 4), ar(C32 + 4 * u, 4)))
            m.append('%s %s, %s, %s, 0' % (MFMA, vr(A + 16 + 4 * t, 4), vr(X + 16 + 4 * t, 4), ar(C32 + 4 * u, 4)))
        for t in range(4):
            m.append('%s %s, %s, %s, %s' % (MFMA, vr(A + 4 * t, 4), vr(X + 16 + 4 * t, 4), ar(sp + 4 * u, 4), vr(A + 4 * t, 4)))
            m.append('%s %s, %s, %s, %s' % (MFMA, vr(A + 16 + 4 * t, 4), vr(X + 4 * t, 4), ar(sn + 4 * u, 4), vr(A + 16 + 4 * t, 4)))
        return m
    def M23(u, inv):
        A = ACC[u]; m = []
        Pr = P[u]; Pi = P[u] + 8; Pn = P[u] + 16
        seq = []
        for kap in range(2):
            if inv: seq += [(kap, C64, Pr, Pi), (kap, S64, Pn, Pr)]
            else:   seq += [(kap, C64, Pr, Pi), (kap, S64, Pi, Pn)]
        for z, (kap, K, dre, dim) in enumerate(seq):
            for t in range(4):
                for part, dd in ((0, dre), (1, dim)):
                    acc = vr(A + 16 * part + 4 * t, 4)
                    k = ar(K + 8 * t + 4 * kap, 4); d = vr(dd + 4 * kap, 4)
                    x, y = (d, k) if inv else (k, d)
                    m.append('%s %s, %s, %s, %s' % (MFMA, acc, x, y, acc if z else '0'))
        return m
    LO = 'op_sel:[0,0,0] op_sel_hi:[0,1,0]'; HI = 'op_sel:[0,1,0] op_sel_hi:[0,1,0]'
    def Vtw(u, inv, nxt, wait=3):
        A = ACC[u]; f = []
        for t in range(4):
            f.append('s_waitcnt lgkmcnt(%d)' % (wait if nxt else 3 - t))
            for h in range(2):
                e = [(A + 4 * t + 2 * h + z, A + 16 + 4 * t + 2 * h + z, TW + 4 * t + 2 * h + z, tmp + 2 * h + z) for z in range(2)]
                s1, s2 = ('-', '') if inv else ('', '-')
                for (x, y, w, r) in e: f.append('v_fma_mix_f32 v%d, v%d, v%d, 0 %s' % (r, x, w, LO))
                for (x, y, w, r) in e: f.append('v_fma_mix_f32 v%d, %sv%d, v%d, v%d %s' % (r, s1, y, w, r, HI))
                for (x, y, w, r) in e: f.append('v_fma_mix_f32 v%d, v%d, v%d, 0 %s' % (y, y, w, LO))
                for (x, y, w, r) in e: f.append('v_fma_mix_f32 v%d, %sv%d, v%d, v%d %s' % (y, s2, x, w, y, HI))
                if h == 1 and nxt: f.append(nxt(t))
                if inv:
                    f.append('v_cvt_pk_bf16_f32 v%d, v%d, v%d' % (X + 4 * t + 2 * u + h, e[0][3], e[1][3]))
                    f.append('v_cvt_pk_bf16_f32 v%d, v%d, v%d' % (X + 16 + 4 * t + 2 * u + h, e[0][1], e[1][1]))
                else:
                    f.append('v_cvt_pk_bf16_f32 v%d, v%d, v%d' % (P[u] + 2 * t + h, e[0][3], e[1][3]))
                    f.append('v_cvt_pk_bf16_f32 v%d, -v%d, -v%d' % (P[u] + 16 + 2 * t + h, e[0][3], e[1][3]))
                    f.append('v_cvt_pk_bf16_f32 v%d, v%d, v%d' % (P[u] + 8 + 2 * t + h, e[0][1], e[1][1]))
        return f
    def Vw(u, nxt):
        A = ACC[u]; f = []
        for t in range(4):
            f.append('s_waitcnt lgkmcnt(3)')
            for h in range(2):
                e = [(A + 4 * t + 2 * h + z, A + 16 + 4 * t + 2 * h + z, TW + 4 * t + 2 * h + z, tmp + z, tmp + 2 + z) for z in range(2)]
                for (x, y, w, r, wr) in e: f.append('v_lshlrev_b32 v%d, 16, v%d' % (wr, w))
                for (x, y, w, r, wr) in e: f.append('v_and_b32 v%d, 0xffff0000, v%d' % (w, w))
                for (x, y, w, r, wr) in e: f.append('v_mul_f32 v%d, v%d, v%d' % (r, x, wr))
                for (x, y, w, r, wr) in e: f.append('v_fma_f32 v%d, -v%d, v%d, v%d' % (r, y, w, r))
                for (x, y, w, r, wr) in e: f.append('v_mul_f32 v%d, v%d, v%d' % (y, y, wr))
                for (x, y, w, r, wr) in e: f.append('v_fmac_f32 v%d, v%d, v%d' % (y, x, w))
                if h == 1: f.append(nxt(t))
                f.append('v_cvt_pk_bf16_f32 v%d, v%d, v%d' % (P[u] + 2 * t + h, e[0][3], e[1][3]))
                f.append('v_cvt_pk_bf16_f32 v%d, v%d, v%d' % (P[u] + 8 + 2 * t + h, e[0][1], e[1][1]))
                f.append('v_cvt_pk_bf16_f32 v%d, -v%d, -v%d' % (P[u] + 16 + 2 * t + h, e[0][1], e[1][1]))
        return f
    frd = []
    for w in range(8):
        frd.append('ds_read_b128 %s, v%d offset:%d' % (ar(C64 + 4 * w, 4), bT, w * 2048))
        frd.append('ds_read_b128 %s, v%d offset:%d' % (ar(S64 + 4 * w, 4), bT, w * 2048 + 1024))
    m = M14(0, False)
    weave(a, m[:8], frd[:8])
    a('s_waitcnt lgkmcnt(4)')
    weave(a, m[8:], frd[8:])
    a('s_waitcnt lgkmcnt(0)')
    for x in Vtw(0, False, rd_tab(L_T1, 1), wait=15): a(x)
    st = ['s_mov_b32 s56, 0x05040100', 's_mov_b32 s57, 0x07060302', 's_waitcnt vmcnt(0)']
    for c in range(8):
        o = P[1] + 4 * (c % 4)
        for i in range(4):
            st.append('v_perm_b32 v%d, v%d, v%d, s%d' % (o + i, WG + 16 + 4 * i + c // 2, WG + 4 * i + c // 2, 56 + c % 2))
        st.append('ds_write_b128 v%d, %s offset:%d' % (wW, vr(o, 4), c * 8192))
    m = M23(0, False)
    for x in m[:16]: a(x)
    weave(a, m[16:], st)
    for x in M14(1, False): a(x)
    a('s_waitcnt lgkmcnt(0)')
    a('s_barrier')
    a('s_lshl_b32 s36, s35, 3')
    a('s_add_u32 s36, s36, s%d' % W)
    a('s_cmp_gt_u32 s36, 288')
    a('s_cbranch_scc1 %s_end' % name)
    for x in Vtw(1, False, rd_w(0), wait=15): a(x)
    weave(a, M23(1, False), Vw(0, rd_w(1)))
    weave(a, M23(0, True), Vw(1, rd_tab(L_T2, 0)))
    a('v_lshlrev_b32 v%d, 2, v0' % bW)
    a('v_lshlrev_b32 v0, 1, v0')
    a('s_mov_b32 s37, 4096')
    gl = lambda v: ['buffer_load_dwordx4 %s, v%d, s[44:47], %s offen offset:%d' %
                    (vr(P[v] + 4 * t, 4), bW, 's37' if v else '0', 4 * (32 * (t // 2) + 4 * (t % 2))) for t in range(4)]
    v3 = Vtw(0, True, rd_tab(L_T2, 1))
    weave(a, M23(1, True), v3[:20] + gl(0) + v3[20:])
    v3 = Vtw(1, True, None)
    for x in v3[:20] + gl(1) + v3[20:]: a(x)
    a('s_lshl_b32 s38, s36, 13')
    a('s_cmp_eq_u32 s36, 288')
    a('s_cselect_b32 s38, 4096, s38')
    a('s_cselect_b32 s36, 0, s36')
    a('s_add_u32 s39, s38, 4096')
    a('s_cmp_eq_u32 s36, 0')
    a('s_cselect_b32 s39, 0x%x, s39' % (576 * 4096))
    def V4(v):
        A = ACC[v]; f = ['s_waitcnt vmcnt(0)'] if v == 0 else []
        for h in range(2):
            for part in range(2):
                b = A + 16 * part + 8 * h
                for z in range(8): f.append('v_mul_f32 v%d, v%d, v%d' % (b + z, b + z, P[v] + 8 * h + z))
                ng = '-' if part else ''
                for z in range(4): f.append('v_cvt_pk_bf16_f32 v%d, %sv%d, %sv%d' % (b + z, ng, b + 2 * z, ng, b + 2 * z + 1))
                f.append('buffer_store_dwordx4 %s, v0, s[48:51], s%d offen offset:%d' % (vr(b, 4), 38 + part, 2048 * v + 64 * h))
        return f
    for x in M14(0, True): a(x)
    weave(a, M14(1, True), V4(0))
    for x in V4(1): a(x)
    a('s_endpgm')
    return V.hi, 88, FFT_LDS
```

```python
from common import *

class GemmCfg:
    def __init__(self, nF, wT, wF, t_is_A, KS, R, t_row, t_kstep, nt_T=False):
        self.nF = nF; self.wT = wT; self.wF = wF; self.t_is_A = t_is_A; self.KS = KS; self.R = R
        self.t_row = t_row; self.t_kstep = t_kstep; self.nt_T = nt_T
        self.tT = 8 // wT; self.tF = nF // wF
        self.stage = KS * (8 + nF) * 1024
        self.lds = self.stage * R
        self.f_kstep = 36864

S_TSRD = 8
S_FSRD = 12
S_TOFF = 16
S_FOFF = 17
S_N = 18
S_WAVE = 19
S_SLOT = 20
S_CNT = 21
S_TMP = 22
S_SW = 26
S_ISS = 27
S_ZSRD = 28
S_ZOFF = 32

def gen_loader(a, c, name, V, switch=False):
    lane = V.get(); t0 = V.get(); t1 = V.get(); vT = V.get(2, 1); vF = V.get()
    a('v_and_b32 v%d, 63, v0' % lane)
    a('s_sub_u32 s%d, s%d, 4' % (S_TMP, S_WAVE))
    a('s_mul_i32 s%d, s%d, %d' % (S_TMP + 1, S_TMP, 8 * c.t_row))
    a('s_mov_b32 s%d, %d' % (S_TMP + 2, c.t_row))
    for e in range(2):
        a('v_lshrrev_b32 v%d, 4, v%d' % (t0, lane))
        a('v_add_u32 v%d, %d, v%d' % (t0, 4 * e, t0))
        a('v_bfe_u32 v%d, v%d, 1, 3' % (t1, lane))
        a('v_xor_b32 v%d, v%d, v%d' % (t1, t1, t0))
        a('v_mul_lo_u32 v%d, v%d, s%d' % (t0, t0, S_TMP + 2))
        a('v_lshl_add_u32 v%d, v%d, 5, v%d' % (t0, t1, t0))
        a('v_and_b32 v%d, 1, v%d' % (t1, lane))
        a('v_lshl_add_u32 v%d, v%d, 4, v%d' % (t0, t1, t0))
        a('v_add_u32 v%d, s%d, v%d' % (vT + e, S_TMP + 1, t0))
    a('v_lshlrev_b32 v%d, 4, v%d' % (vF, lane))
    a('s_mov_b32 s%d, 0' % S_SLOT)
    a('s_mov_b32 s%d, 0' % S_ISS)
    for w in range(1, 4):
        a('s_cmp_eq_u32 s%d, %d' % (S_TMP, w))
        a('s_cbranch_scc1 %s_ld%d' % (name, w))
    nFtot = c.KS * c.nF
    for w in range(4):
        a.label('%s_ld%d' % (name, w))
        lo = (nFtot * w + 3) // 4 if False else sum(nFtot // 4 + (1 if j < nFtot % 4 else 0) for j in range(w))
        cntF = nFtot // 4 + (1 if w < nFtot % 4 else 0)
        cnt = 2 * c.KS + cntF
        nt = ' nt' if c.nt_T else ''
        def issue():
            if switch:
                l = a.newlabel(name + '_sw')
                a('s_cmp_lg_u32 s%d, s%d' % (S_ISS, S_SW))
                a('s_cbranch_scc1 %s' % l)
                a('s_mov_b32 s%d, s%d' % (S_TSRD, S_ZSRD))
                a('s_mov_b32 s%d, s%d' % (S_TSRD + 1, S_ZSRD + 1))
                a('s_mov_b32 s%d, s%d' % (S_TSRD + 2, S_ZSRD + 2))
                a('s_mov_b32 s%d, s%d' % (S_TOFF, S_ZOFF))
                a.label(l)
                a('s_add_u32 s%d, s%d, 1' % (S_ISS, S_ISS))
            for ks in range(c.KS):
                for e in range(2):
                    a('s_add_u32 m0, s%d, %d' % (S_SLOT, ks * 8192 + (2 * w + e) * 1024))
                    if ks == 0: so = S_TOFF
                    else:
                        so = S_TMP + 3
                        if e == 0: a('s_add_u32 s%d, s%d, %d' % (so, S_TOFF, ks * c.t_kstep))
                    a('buffer_load_dwordx4 v%d, s[%d:%d], s%d offen%s lds' % (vT + e, S_TSRD, S_TSRD + 3, so, nt))
            for j in range(lo, lo + cntF):
                ks = j // c.nF; t = j % c.nF
                a('s_add_u32 m0, s%d, %d' % (S_SLOT, c.KS * 8192 + j * 1024))
                a('s_add_u32 s%d, s%d, %d' % (S_TMP + 3, S_FOFF, ks * c.f_kstep + t * 1024))
                a('buffer_load_dwordx4 v%d, s[%d:%d], s%d offen lds' % (vF, S_FSRD, S_FSRD + 3, S_TMP + 3))
            a('s_add_u32 s%d, s%d, %d' % (S_TOFF, S_TOFF, c.KS * c.t_kstep))
            a('s_add_u32 s%d, s%d, %d' % (S_FOFF, S_FOFF, c.KS * c.f_kstep))
            a('s_add_u32 s%d, s%d, %d' % (S_SLOT, S_SLOT, c.stage))
            a('s_cmp_eq_u32 s%d, %d' % (S_SLOT, c.lds))
            a('s_cselect_b32 s%d, 0, s%d' % (S_SLOT, S_SLOT))
        assert cnt * c.R <= 63, 'vmcnt overflow'
        a('s_mov_b32 s%d, %d' % (S_CNT, c.R))
        lp = a.newlabel(name + '_pro'); a.label(lp)
        issue()
        a('s_sub_u32 s%d, s%d, 1' % (S_CNT, S_CNT))
        a('s_cmp_lg_u32 s%d, 0' % S_CNT)
        a('s_cbranch_scc1 %s' % lp)
        a('s_waitcnt vmcnt(%d)' % ((c.R - 1) * cnt))
        a('s_barrier')
        a('s_sub_u32 s%d, s%d, %d' % (S_CNT, S_N, c.R))
        lp = a.newlabel(name + '_main'); a.label(lp)
        a('s_waitcnt vmcnt(%d)' % ((c.R - 2) * cnt))
        a('s_barrier')
        issue()
        a('s_sub_u32 s%d, s%d, 1' % (S_CNT, S_CNT))
        a('s_cmp_lg_u32 s%d, 0' % S_CNT)
        a('s_cbranch_scc1 %s' % lp)
        for k in range(c.R - 2, -1, -1):
            a('s_waitcnt vmcnt(%d)' % (k * cnt))
            a('s_barrier')
        a('s_endpgm')

def gen_compute(a, c, name, V, pre=None, mid=None):
    lane = V.get(); t0 = V.get(); t1 = V.get()
    bT = V.get(c.tT, 1); bF = V.get(); cT = V.get(c.tT, 1); cF = V.get()
    acc = V.get(4 * c.tT * c.tF, 4)
    fT = [V.get(4 * c.tT, 4) for _ in range(2)]
    fF = [V.get(4 * c.tF, 4) for _ in range(2)]
    a('s_and_b32 s%d, s%d, %d' % (S_TMP, S_WAVE, c.wT - 1))
    a('s_lshr_b32 s%d, s%d, %d' % (S_TMP + 1, S_WAVE, c.wT.bit_length() - 1))
    a('v_and_b32 v%d, 63, v0' % lane)
    a('v_lshrrev_b32 v%d, 2, v%d' % (t0, lane))
    a('v_and_b32 v%d, 7, v%d' % (t1, t0))
    a('s_mul_i32 s%d, s%d, %d' % (S_TMP + 2, S_TMP, c.tT))
    a('v_xor_b32 v%d, s%d, v%d' % (t1, S_TMP + 2, t1))
    a('v_lshlrev_b32 v%d, 5, v%d' % (t1, t1))
    a('v_lshl_add_u32 v%d, v%d, 8, v%d' % (t0, t0, t1))
    a('v_and_b32 v%d, 3, v%d' % (t1, lane))
    a('v_lshl_add_u32 v%d, v%d, 3, v%d' % (bT, t1, t0))
    for i in range(1, c.tT):
        a('v_xor_b32 v%d, %d, v%d' % (bT + i, 32 * i, bT))
    a('s_mul_i32 s%d, s%d, %d' % (S_TMP + 2, S_TMP + 1, c.tF * 1024))
    a('s_add_u32 s%d, s%d, %d' % (S_TMP + 2, S_TMP + 2, c.KS * 8192))
    a('v_lshl_add_u32 v%d, v%d, 4, s%d' % (bF, lane, S_TMP + 2))
    if pre: pre(lane, t0, t1, acc)
    else:
        for i in range(4 * c.tT * c.tF):
            a('v_mov_b32 v%d, 0' % (acc + i))
    def reads(st, ks):
        r = []
        for i in range(c.tT):
            for h in range(2):
                r.append('ds_read_b64_tr_b16 %s, v%d offset:%d' % (vr(fT[st] + 4 * i + 2 * h, 2), cT + i, ks * 8192 + h * 4096))
        rf = ['ds_read_b128 %s, v%d offset:%d' % (vr(fF[st] + 4 * i, 4), cF, (ks * c.nF + i) * 1024) for i in range(c.tF)]
        out = []
        while r or rf:
            if rf: out.append(rf.pop(0))
            for _ in range(2):
                if r: out.append(r.pop(0))
        return out
    def mfmas(st):
        m = []
        for iT in range(c.tT):
            for iF in range(c.tF):
                d = vr(acc + 4 * (iT * c.tF + iF), 4)
                x = vr(fT[st] + 4 * iT, 4); y = vr(fF[st] + 4 * iF, 4)
                if not c.t_is_A: x, y = y, x
                m.append('%s %s, %s, %s, %s' % (MFMA, d, x, y, d))
        return m
    def setaddr():
        return ['v_add_u32 v%d, s%d, v%d' % (cT + i, S_SLOT, bT + i) for i in range(c.tT)] + \
               ['v_add_u32 v%d, s%d, v%d' % (cF, S_SLOT, bF)]
    def adv():
        a('s_add_u32 s%d, s%d, %d' % (S_SLOT, S_SLOT, c.stage))
        a('s_cmp_eq_u32 s%d, %d' % (S_SLOT, c.lds))
        a('s_cselect_b32 s%d, 0, s%d' % (S_SLOT, S_SLOT))
    def weave(m, f, lead=0):
        m = list(m); f = list(f)
        for _ in range(lead): a(m.pop(0))
        while m or f:
            for _ in range(2):
                if f: a(f.pop(0))
            if m: a(m.pop(0))
    a('s_mov_b32 s%d, 0' % S_SLOT)
    for x in setaddr(): a(x)
    adv()
    a('s_barrier')
    for x in reads(0, 0): a(x)
    a('s_mov_b32 s%d, 0' % S_CNT)
    U = 1 if c.KS % 2 == 0 else 2
    loop = a.newlabel(name + '_cl'); done = a.newlabel(name + '_cd')
    a.label(loop)
    st = 0
    exits = []
    for u in range(U):
        for ks in range(c.KS - 1):
            a('s_waitcnt lgkmcnt(0)')
            weave(mfmas(st), reads(st ^ 1, ks + 1), lead=1)
            st ^= 1
        a('s_add_u32 s%d, s%d, 1' % (S_CNT, S_CNT))
        a('s_cmp_eq_u32 s%d, s%d' % (S_CNT, S_N))
        ex = a.newlabel(name + '_ex'); exits.append((ex, st))
        a('s_cbranch_scc1 %s' % ex)
        for x in setaddr(): a(x)
        adv()
        a('s_waitcnt lgkmcnt(0)')
        m = mfmas(st)
        a(m.pop(0))
        a('s_barrier')
        weave(m, reads(st ^ 1, 0))
        st ^= 1
        if mid:
            sk = a.newlabel(name + '_nomid')
            a('s_cmp_lg_u32 s%d, s%d' % (S_CNT, S_SW))
            a('s_cbranch_scc1 %s' % sk)
            mid(acc)
            a.label(sk)
    a('s_branch %s' % loop)
    for ex, s_ in exits:
        a.label(ex)
        a('s_waitcnt lgkmcnt(0)')
        for x in mfmas(s_): a(x)
        a('s_branch %s' % done)
    a.label(done)
    return dict(acc=acc, lane=lane, t0=t0, t1=t1, fT=fT, fF=fF)
```

```python
from common import *
from gemm import *
import math

G1 = GemmCfg(nF=6, wT=2, wF=2, t_is_A=True, KS=2, R=5, t_row=64 * 9216, t_kstep=9216)

def gen_gemm1(a, name, c):
    a('s_mul_i32 s35, s33, 27')
    a('s_add_u32 s35, s35, s34')
    a('s_mul_i32 s36, s35, 43691')
    a('s_lshr_b32 s36, s36, 18')
    a('s_mul_i32 s37, s36, 6')
    a('s_sub_u32 s37, s35, s37')
    a('s_load_dwordx2 s[8:9], s[0:1], %d' % K_W1)
    a('s_load_dwordx2 s[40:41], s[0:1], %d' % K_WS)
    a('s_load_dwordx2 s[44:45], s[0:1], %d' % K_B1)
    a('s_lshl_b32 s%d, s36, 8' % S_TOFF)
    a('s_mul_i32 s%d, s37, %d' % (S_FOFF, 6 * 1024))
    a('s_mov_b32 s%d, %d' % (S_N, 64 // c.KS))
    a('s_waitcnt lgkmcnt(0)')
    srd(a, 8, 8, S * F * 2)
    srd(a, 12, 40, 64 * 36 * 1024, WS_HT)
    a('s_cmp_lt_u32 s%d, 4' % S_WAVE)
    a('s_cbranch_scc1 %s_comp' % name)
    V = Alloc(1, 128)
    gen_loader(a, c, name, V)
    hi = V.hi
    a.label('%s_comp' % name)
    V = Alloc(1, 256)
    srd(a, 44, 44, F * 2)
    srd(a, 48, 40, UT_BYTES, WS_UT)
    bb = V.get(2 * c.tT, 2)
    st = {}
    def pre(lane, t0, t1, acc):
        a('s_lshl_b32 s38, s36, 8')
        a('s_lshl_b32 s39, s%d, 7' % S_TMP)
        a('s_add_u32 s38, s38, s39')
        a('v_lshrrev_b32 v%d, 4, v%d' % (t0, lane))
        a('v_lshlrev_b32 v%d, 3, v%d' % (t0, t0))
        for iT in range(c.tT):
            a('buffer_load_dwordx2 %s, v%d, s[44:47], s38 offen offset:%d' % (vr(bb + 2 * iT, 2), t0, 32 * iT))
        a('s_lshl_b32 s38, s36, 2')
        a('s_lshl_b32 s39, s%d, 1' % S_TMP)
        a('s_add_u32 s38, s38, s39')
        a('s_mul_i32 s38, s38, 36')
        a('s_mul_i32 s39, s37, 6')
        a('s_add_u32 s38, s38, s39')
        a('s_mul_i32 s39, s%d, 3' % (S_TMP + 1))
        a('s_add_u32 s38, s38, s39')
        a('s_lshl_b32 s38, s38, 10')
        a('s_add_u32 s39, s38, %d' % (36 * 1024))
        a('s_waitcnt vmcnt(0)')
        for iT in range(c.tT):
            for iF in range(c.tF):
                d = acc + 4 * (iT * c.tF + iF)
                a('v_lshlrev_b32 v%d, 16, v%d' % (d, bb + 2 * iT))
                a('v_and_b32 v%d, 0xffff0000, v%d' % (d + 1, bb + 2 * iT))
                a('v_lshlrev_b32 v%d, 16, v%d' % (d + 2, bb + 2 * iT + 1))
                a('v_and_b32 v%d, 0xffff0000, v%d' % (d + 3, bb + 2 * iT + 1))
    r = gen_compute(a, c, name, V, pre=pre)
    acc = r['acc']; lane = r['lane']; t0 = r['t0']
    k0 = -2.0 * math.sqrt(2.0 / math.pi) * 1.4426950408889634
    k1 = k0 * 0.044715
    a('s_mov_b32 s42, %s' % flit(k1))
    a('v_mov_b32 v%d, %s' % (r['t1'], flit(k0)))
    a('v_lshlrev_b32 v%d, 4, v%d' % (t0, lane))
    tmp = r['fT'][0]
    outs = r['fF'][0]
    nb = 0
    for q in range(c.tT // 2):
        for iF in range(c.tF):
            T = tmp + 8 * (nb % 4)
            O = outs + 4 * (nb % 6)
            src = [acc + 4 * ((2 * q + h) * c.tF + iF) + i for h in range(2) for i in range(4)]
            for e in range(8): a('v_mul_f32 v%d, v%d, v%d' % (T + e, src[e], src[e]))
            for e in range(8): a('v_fma_f32 v%d, v%d, s42, v%d' % (T + e, T + e, r['t1']))
            for e in range(8): a('v_mul_f32 v%d, v%d, v%d' % (T + e, T + e, src[e]))
            for e in range(8): a('v_exp_f32 v%d, v%d' % (T + e, T + e))
            for e in range(8): a('v_add_f32 v%d, 1.0, v%d' % (T + e, T + e))
            for e in range(8): a('v_rcp_f32 v%d, v%d' % (T + e, T + e))
            for e in range(8): a('v_mul_f32 v%d, v%d, v%d' % (T + e, T + e, src[e]))
            for e in range(4): a('v_cvt_pk_bf16_f32 v%d, v%d, v%d' % (O + e, T + 2 * e, T + 2 * e + 1))
            a('buffer_store_dwordx4 %s, v%d, s[48:51], s%d offen offset:%d' % (vr(O, 4), t0, 38 + q, 1024 * iF))
            nb += 1
    a('s_endpgm')
    return max(hi, V.hi)

def gen_k2(name, fft=None, c=G1):
    a = Asm()
    a('s_cmp_ge_u32 s2, 256')
    a('s_cbranch_scc1 %s_end' % name)
    a('v_lshrrev_b32 v1, 6, v0')
    a('v_readfirstlane_b32 s%d, v1' % S_WAVE)
    a('s_and_b32 s33, s2, 7')
    a('s_lshr_b32 s34, s2, 3')
    a('s_cmp_ge_u32 s34, 27')
    a('s_cbranch_scc1 %s_fft' % name)
    hi = gen_gemm1(a, name, c)
    a.label('%s_fft' % name)
    acc_off = None
    lds = c.lds
    if fft:
        hi2, nacc, lds2 = fft(a, name)
        lds = max(lds, lds2)
        hi = max(hi, hi2)
    else: nacc = 0
    a.label('%s_end' % name)
    a('s_endpgm')
    ao = (hi + 3) // 4 * 4
    nv = (ao + nacc + 7) // 8 * 8
    assert nv <= 256, nv
    return dict(name=name, text=kernel_header(name) + a.finish(), desc=kernel_desc(name, nv, ao),
                grid=256, block=512, lds=lds)
```

```python
from common import *
from gemm import *

G2A = GemmCfg(nF=9, wT=4, wF=1, t_is_A=False, KS=1, R=8, t_row=4096, t_kstep=131072)
PT_SLICE = 64 * 36 * 1024

def gen_k3(name, c=G2A, bounds=(0, 41, 82, 122, 162)):
    a = Asm()
    a('s_cmp_ge_u32 s2, 256')
    a('s_cbranch_scc1 %s_end' % name)
    a('s_load_dwordx2 s[8:9], s[0:1], %d' % K_W2)
    a('s_load_dwordx2 s[40:41], s[0:1], %d' % K_WS)
    a('s_load_dwordx2 s[44:45], s[0:1], %d' % K_B2)
    a('v_lshrrev_b32 v1, 6, v0')
    a('v_readfirstlane_b32 s%d, v1' % S_WAVE)
    a('s_bfe_u32 s33, s2, 0x20001')
    a('s_and_b32 s34, s2, 1')
    a('s_lshl_b32 s34, s34, 3')
    a('s_lshr_b32 s35, s2, 5')
    a('s_add_u32 s34, s34, s35')
    a('s_bfe_u32 s35, s2, 0x20003')
    a('s_mov_b32 s36, %d' % bounds[0]); a('s_mov_b32 s%d, %d' % (S_N, (bounds[1] - bounds[0]) // c.KS))
    for sl in range(1, 4):
        a('s_cmp_eq_u32 s33, %d' % sl)
        a('s_cselect_b32 s36, %d, s36' % bounds[sl])
        a('s_cselect_b32 s%d, %d, s%d' % (S_N, (bounds[sl + 1] - bounds[sl]) // c.KS, S_N))
    assert all((bounds[i + 1] - bounds[i]) % c.KS == 0 for i in range(4)) and (144 - bounds[3]) % c.KS == 0
    a('s_cselect_b32 s%d, %d, s%d' % (S_SW, (144 - bounds[3]) // c.KS, S_N))
    a('s_lshl_b32 s%d, s34, 8' % S_ZOFF)
    a('s_lshl_b32 s%d, s36, 17' % S_TOFF)
    a('s_add_u32 s%d, s%d, s%d' % (S_TOFF, S_TOFF, S_ZOFF))
    a('s_mul_i32 s%d, s36, 36' % S_FOFF)
    a('s_mul_i32 s37, s35, 9')
    a('s_add_u32 s%d, s%d, s37' % (S_FOFF, S_FOFF))
    a('s_lshl_b32 s%d, s%d, 10' % (S_FOFF, S_FOFF))
    a('s_waitcnt lgkmcnt(0)')
    srd(a, 8, 8, S * F * 2)
    srd(a, 12, 40, UT_BYTES, WS_UT)
    a('s_cmp_lt_u32 s%d, 4' % S_WAVE)
    a('s_cbranch_scc1 %s_comp' % name)
    srd(a, S_ZSRD, 40, 576 * 4096, WS_ZT)
    V = Alloc(1, 128)
    gen_loader(a, c, name, V, switch=True)
    hi = V.hi
    a.label('%s_comp' % name)
    V = Alloc(1, 256)
    srd(a, 44, 44, S * 2)
    srd(a, 48, 40, 4 * PT_SLICE, WS_PT)
    srd(a, 52, 40, S * 4, WS_G)
    sc = V.get(c.tT, 1); bb = V.get(c.tT, 1)
    def pre(lane, t0, t1, acc):
        a('s_lshl_b32 s38, s34, 2')
        a('s_add_u32 s38, s38, s%d' % S_TMP)
        a('s_lshl_b32 s39, s38, 5')
        a('v_and_b32 v%d, 15, v%d' % (t0, lane))
        a('v_add_u32 v%d, s39, v%d' % (t0, t0))
        a('v_lshlrev_b32 v%d, 1, v%d' % (t1, t0))
        a('v_lshlrev_b32 v%d, 2, v%d' % (t0, t0))
        a('s_cmp_eq_u32 s33, 0')
        a('s_cselect_b32 s46, s46, 0')
        for iT in range(c.tT):
            a('buffer_load_ushort v%d, v%d, s[44:47], 0 offen offset:%d' % (bb + iT, t1, 32 * iT))
            a('buffer_load_dword v%d, v%d, s[52:55], 0 offen offset:%d' % (sc + iT, t0, 64 * iT))
        a('s_mul_i32 s38, s38, 36')
        a('s_add_u32 s38, s38, s37')
        a('s_lshl_b32 s38, s38, 10')
        a('s_mul_i32 s39, s33, %d' % PT_SLICE)
        a('s_add_u32 s38, s38, s39')
        a('s_waitcnt vmcnt(0)')
        for iT in range(c.tT):
            for r in range(4 * c.tF):
                a('v_lshlrev_b32 v%d, 16, v%d' % (acc + 4 * iT * c.tF + r, bb + iT))
    def mid(acc):
        for iT in range(c.tT):
            for r in range(4 * c.tF):
                a('v_mul_f32 v%d, v%d, v%d' % (acc + 4 * iT * c.tF + r, acc + 4 * iT * c.tF + r, sc + iT))
        for iT in range(c.tT): a('v_mov_b32 v%d, 1.0' % (sc + iT))
    r = gen_compute(a, c, name, V, pre=pre, mid=mid)
    acc = r['acc']; t0 = r['t0']
    a('v_lshlrev_b32 v%d, 4, v%d' % (t0, r['lane']))
    O = r['fF'][0]
    for iF in range(c.tF):
        o = O + 4 * iF
        for iT in range(2):
            d = acc + 4 * (iT * c.tF + iF)
            for i in range(4): a('v_mul_f32 v%d, v%d, v%d' % (d + i, d + i, sc + iT))
            a('v_cvt_pk_bf16_f32 v%d, v%d, v%d' % (o + 2 * iT, d, d + 1))
            a('v_cvt_pk_bf16_f32 v%d, v%d, v%d' % (o + 2 * iT + 1, d + 2, d + 3))
        a('buffer_store_dwordx4 %s, v%d, s[48:51], s38 offen offset:%d' % (vr(o, 4), t0, 1024 * (iF % 4)))
        if iF % 4 == 3: a('s_add_u32 s38, s38, 4096')
    a.label('%s_end' % name)
    a('s_endpgm')
    hi = max(hi, V.hi)
    nv = (hi + 7) // 8 * 8
    return dict(name=name, text=kernel_header(name) + a.finish(), desc=kernel_desc(name, nv, nv),
                grid=256, block=512, lds=c.lds)

def gen_final(name, nsl=4):
    a = Asm()
    a('s_cmp_ge_u32 s2, 288')
    a('s_cbranch_scc1 %s_end' % name)
    a('s_load_dwordx2 s[8:9], s[0:1], %d' % K_OUT)
    a('s_load_dwordx2 s[4:5], s[0:1], %d' % K_WS)
    a('v_lshrrev_b32 v1, 6, v0')
    a('v_readfirstlane_b32 s16, v1')
    a('s_lshl_b32 s17, s2, 2')
    a('s_add_u32 s17, s17, s16')
    a('s_lshl_b32 s18, s17, 11')
    a('v_and_b32 v1, 63, v0')
    a('v_lshlrev_b32 v2, 4, v1')
    a('s_waitcnt lgkmcnt(0)')
    srd(a, 12, 4, nsl * PT_SLICE, WS_PT)
    L = 8
    for sl in range(nsl):
        a('buffer_load_dwordx4 %s, v2, s[12:15], s18 offen' % vr(L + 8 * sl, 4))
        a('buffer_load_dwordx4 %s, v2, s[12:15], s18 offen offset:1024' % vr(L + 8 * sl + 4, 4))
        if sl < nsl - 1: a('s_add_u32 s18, s18, %d' % PT_SLICE)
    srd(a, 8, 8, S * D * 2)
    a('s_mul_i32 s19, s17, 3641')
    a('s_lshr_b32 s19, s19, 16')
    a('s_mul_i32 s20, s19, 18')
    a('s_sub_u32 s20, s17, s20')
    a('s_mul_i32 s19, s19, %d' % (32 * 1152))
    a('s_lshl_b32 s20, s20, 6')
    a('s_add_u32 s19, s19, s20')
    a('s_add_u32 s20, s19, %d' % (16 * 1152))
    a('v_and_b32 v3, 15, v1')
    a('v_mul_u32_u24 v3, 1152, v3')
    a('v_lshrrev_b32 v4, 4, v1')
    a('v_lshl_add_u32 v3, v4, 4, v3')
    A = L + 8 * nsl; T = A + 16
    for sl in range(nsl):
        a('s_waitcnt vmcnt(%d)' % (2 * (nsl - 1 - sl)))
        for r in range(8):
            x = L + 8 * sl + r
            if sl == 0:
                a('v_lshlrev_b32 v%d, 16, v%d' % (A + 2 * r, x))
                a('v_and_b32 v%d, 0xffff0000, v%d' % (A + 2 * r + 1, x))
            else:
                a('v_lshlrev_b32 v%d, 16, v%d' % (T, x))
                a('v_and_b32 v%d, 0xffff0000, v%d' % (x, x))
                a('v_add_f32 v%d, v%d, v%d' % (A + 2 * r, A + 2 * r, T))
                a('v_add_f32 v%d, v%d, v%d' % (A + 2 * r + 1, A + 2 * r + 1, x))
    for iT in range(2):
        o = L + 4 * iT
        a('v_cvt_pk_bf16_f32 v%d, v%d, v%d' % (o, A + 4 * iT, A + 4 * iT + 1))
        a('v_cvt_pk_bf16_f32 v%d, v%d, v%d' % (o + 1, A + 4 * iT + 2, A + 4 * iT + 3))
        a('v_cvt_pk_bf16_f32 v%d, v%d, v%d' % (o + 2, A + 8 + 4 * iT, A + 8 + 4 * iT + 1))
        a('v_cvt_pk_bf16_f32 v%d, v%d, v%d' % (o + 3, A + 8 + 4 * iT + 2, A + 8 + 4 * iT + 3))
        a('buffer_store_dwordx4 %s, v3, s[8:11], s%d offen' % (vr(o, 4), 19 + iT))
    a.label('%s_end' % name)
    a('s_endpgm')
    nv = (T + 1 + 7) // 8 * 8
    return dict(name=name, text=kernel_header(name) + a.finish(), desc=kernel_desc(name, nv, nv),
                grid=288, block=256, lds=0)
```

```python
from common import *

PREP_LDS = 9216 + 8 * 2368 + 128
def gen_prep(name):
    a = Asm()
    V = Alloc(1, 256)
    XB = 0; HB = 9216; PITCH = 2368; YO = 1152
    a('s_cmp_ge_u32 s2, 256')
    a('s_cbranch_scc1 %s_end' % name)
    a('s_load_dwordx2 s[4:5], s[0:1], %d' % K_X)
    a('s_load_dwordx2 s[8:9], s[0:1], %d' % K_GW)
    a('s_load_dwordx2 s[28:29], s[0:1], %d' % K_WS)
    lane = V.get(); q = V.get(); g = V.get(); n = V.get(); r = V.get(); t0 = V.get(); t1 = V.get(); t2 = V.get()
    vs = V.get()
    a('v_and_b32 v%d, 63, v0' % lane)
    a('v_lshrrev_b32 v%d, 5, v0' % r)
    a('v_and_b32 v%d, 31, v0' % q)
    a('v_lshrrev_b32 v%d, 6, v0' % t0)
    a('v_readfirstlane_b32 s24, v%d' % t0)
    a('s_and_b32 s25, s2, 63')
    a('s_lshr_b32 s26, s2, 6')
    a('v_lshrrev_b32 v%d, 2, v%d' % (t0, r))
    a('v_and_b32 v%d, 3, v%d' % (t1, r))
    a('v_lshl_add_u32 v%d, v%d, 4, v%d' % (t0, t0, t1))
    a('s_lshl_b32 s27, s26, 8')
    a('s_add_u32 s27, s27, s25')
    a('v_lshl_add_u32 v%d, v%d, 6, s27' % (vs, t0))
    a('v_mul_u32_u24 v%d, 1152, v%d' % (t0, vs))
    q16 = V.get(); q4 = V.get()
    a('v_lshlrev_b32 v%d, 4, v%d' % (q16, q))
    a('v_lshlrev_b32 v%d, 2, v%d' % (q4, q))
    a('v_add_u32 v%d, v%d, v%d' % (t1, t0, q16))
    a('v_add_u32 v%d, v%d, v%d' % (t2, t0, q4))
    X = V.get(10, 4); GW = V.get(10, 4)
    a('s_waitcnt lgkmcnt(0)')
    srd(a, 4, 4, S * D * 2)
    srd(a, 8, 8, D * 2)
    a('buffer_load_dwordx4 %s, v%d, s[4:7], 0 offen' % (vr(X, 4), t1))
    a('buffer_load_dwordx4 %s, v%d, s[4:7], 0 offen offset:512' % (vr(X + 4, 4), t1))
    a('buffer_load_dword v%d, v%d, s[4:7], 0 offen offset:1024' % (X + 8, t2))
    a('buffer_load_dwordx4 %s, v%d, s[8:11], 0 offen' % (vr(GW, 4), q16))
    a('buffer_load_dwordx4 %s, v%d, s[8:11], 0 offen offset:512' % (vr(GW + 4, 4), q16))
    a('buffer_load_dword v%d, v%d, s[8:11], 0 offen offset:1024' % (GW + 8, q4))
    srd(a, 12, 28, 64 * 36 * 1024, WS_HT)
    srd(a, 16, 28, X1_BYTES, WS_X1)
    srd(a, 20, 28, UT_BYTES, WS_UT)
    srd(a, 32, 28, S * 8, WS_G)
    a('v_lshrrev_b32 v%d, 4, v%d' % (g, lane))
    a('v_and_b32 v%d, 15, v%d' % (n, lane))
    gf4 = V.get(); nf = V.get()
    a('v_lshlrev_b32 v%d, 2, v%d' % (t0, g))
    a('v_cvt_f32_u32 v%d, v%d' % (gf4, t0))
    a('v_cvt_f32_u32 v%d, v%d' % (nf, n))
    a('s_lshl_b32 s30, s2, 2')
    a('s_add_u32 s30, s30, s24')
    a('s_cmp_ge_u32 s30, 648')
    a('s_cbranch_scc1 %s_nomt' % name)
    a('s_mul_i32 s31, s30, 1821')
    a('s_lshr_b32 s31, s31, 16')
    a('s_mul_i32 s36, s31, 36')
    a('s_sub_u32 s36, s30, s36')
    a('s_lshr_b32 s37, s36, 1')
    a('s_lshl_b32 s37, s37, 5')
    a('s_and_b32 s38, s36, 1')
    a('s_lshl_b32 s38, s38, 2')
    a('s_add_u32 s37, s37, s38')
    m = V.mark()
    dd = V.get(); kk = V.get(); MT = V.get(4, 4); ang = V.get(4); cs = V.get(8)
    a('v_lshrrev_b32 v%d, 2, v%d' % (t0, n))
    a('v_and_b32 v%d, 3, v%d' % (t1, n))
    a('v_lshl_add_u32 v%d, v%d, 3, v%d' % (t0, t0, t1))
    a('v_add_u32 v%d, s37, v%d' % (dd, t0))
    a('s_lshl_b32 s38, s31, 4')
    a('v_lshl_add_u32 v%d, v%d, 1, s38' % (kk, g))
    for jj in range(4):
        a('v_add_u32 v%d, %d, v%d' % (t0, 8 * (jj // 2) + jj % 2, kk))
        a('v_mul_u32_u24 v%d, v%d, v%d' % (t0, t0, dd))
        a('v_cvt_f32_u32 v%d, v%d' % (t0, t0))
        a('v_mul_f32 v%d, %s, v%d' % (t0, flit(1.0 / 576), t0))
        a('v_fract_f32 v%d, v%d' % (ang + jj, t0))
    for jj in range(4):
        a('v_cos_f32 v%d, v%d' % (cs + 2 * jj, ang + jj))
        a('v_sin_f32 v%d, v%d' % (cs + 2 * jj + 1, ang + jj))
    for jj in range(4):
        a('v_cvt_pk_bf16_f32 v%d, v%d, v%d' % (MT + jj, cs + 2 * jj, cs + 2 * jj + 1))
    a('v_lshlrev_b32 v%d, 31, v%d' % (t0, dd))
    a('v_or_b32 v%d, 0x3f003f00, v%d' % (t0, t0))
    a('v_cmp_eq_u32 vcc, 0, v%d' % kk)
    a('v_cndmask_b32 v%d, v%d, v%d, vcc' % (MT, MT, t0))
    a('s_add_u32 s30, s30, %d' % (144 * 36))
    a('s_lshl_b32 s30, s30, 10')
    a('v_lshlrev_b32 v%d, 4, v%d' % (t0, lane))
    a('buffer_store_dwordx4 %s, v%d, s[20:23], s30 offen' % (vr(MT, 4), t0))
    a.label('%s_nomt' % name)
    BC = V.get(4, 4); BS = V.get(4, 4)
    C0 = V.get(4, 4); S0 = V.get(4, 4); NS0 = V.get(4, 4); C1 = V.get(4, 4); S1 = V.get(4, 4); NC1 = V.get(4, 4)
    TC = V.get(8); TS = V.get(8)
    m2 = V.mark()
    idx = V.get(8); ca = V.get(2); cb = V.get(2); sc = V.get()
    for j in range(8):
        a('v_add_f32 v%d, %s, v%d' % (idx + j, flit(16 * (j // 4) + j % 4), gf4))
    a('v_mul_f32 v%d, %s, v%d' % (sc, flit(1.0 / 18), nf))
    for p in range(3):
        a('v_mul_f32 v%d, v%d, v%d' % (t0, idx + 2 * p, sc))
        a('v_mul_f32 v%d, v%d, v%d' % (t1, idx + 2 * p + 1, sc))
        a('v_cos_f32 v%d, v%d' % (ca, t0)); a('v_cos_f32 v%d, v%d' % (ca + 1, t1))
        a('v_sin_f32 v%d, v%d' % (cb, t0)); a('v_sin_f32 v%d, v%d' % (cb + 1, t1))
        a('v_cvt_pk_bf16_f32 v%d, v%d, v%d' % (BC + p, ca, ca + 1))
        a('v_cvt_pk_bf16_f32 v%d, -v%d, -v%d' % (BS + p, cb, cb + 1))
    a('v_cmp_eq_u32 vcc, 0, v%d' % g)
    a('v_mov_b32 v%d, 0' % (BC + 3)); a('v_mov_b32 v%d, 0' % (BS + 3))
    a('v_cndmask_b32 v%d, 0, v%d, vcc' % (BC + 2, BC + 2))
    a('v_cndmask_b32 v%d, 0, v%d, vcc' % (BS + 2, BS + 2))
    a('v_mul_f32 v%d, %s, v%d' % (sc, flit(1.0 / 576), nf))
    for j in range(8):
        a('v_mul_f32 v%d, v%d, v%d' % (t0, idx + j, sc))
        a('v_cos_f32 v%d, v%d' % (TC + j, t0)); a('v_sin_f32 v%d, v%d' % (TS + j, t0))
    a('v_mul_f32 v%d, %s, v%d' % (sc, flit(1.0 / 32), nf))
    for p in range(4):
        a('v_mul_f32 v%d, v%d, v%d' % (t0, idx + 2 * p, sc))
        a('v_mul_f32 v%d, v%d, v%d' % (t1, idx + 2 * p + 1, sc))
        a('v_cos_f32 v%d, v%d' % (ca, t0)); a('v_cos_f32 v%d, v%d' % (ca + 1, t1))
        a('v_sin_f32 v%d, v%d' % (cb, t0)); a('v_sin_f32 v%d, v%d' % (cb + 1, t1))
        a('v_cvt_pk_bf16_f32 v%d, v%d, v%d' % (C0 + p, ca, ca + 1))
        a('v_cvt_pk_bf16_f32 v%d, v%d, v%d' % (S0 + p, cb, cb + 1))
    for p in range(4):
        a('v_xor_b32 v%d, 0x80008000, v%d' % (NS0 + p, S0 + p))
        a('v_xor_b32 v%d, 0x80000000, v%d' % (C1 + p, C0 + p))
        a('v_xor_b32 v%d, 0x80000000, v%d' % (S1 + p, S0 + p))
        a('v_xor_b32 v%d, 0x8000, v%d' % (NC1 + p, C0 + p))
    V.release(m2)
    xa = V.get(); xb = V.get(); ha = V.get(); hb = V.get(); tra = V.get(); trb = V.get(); ya0 = V.get(); ya1 = V.get()
    a('v_mul_u32_u24 v%d, 1152, v%d' % (t0, r))
    a('v_add_u32 v%d, v%d, v%d' % (xa, t0, q16))
    a('v_add_u32 v%d, v%d, v%d' % (xb, t0, q4))
    a('v_mul_u32_u24 v%d, %d, v%d' % (t0, PITCH, r))
    a('v_add_u32 v%d, v%d, v%d' % (ha, t0, q16))
    a('v_add_u32 v%d, v%d, v%d' % (hb, t0, q4))
    a('s_mul_i32 s30, s24, 2304')
    a('v_lshrrev_b32 v%d, 2, v%d' % (t0, lane))
    a('v_and_b32 v%d, 3, v%d' % (t1, lane))
    a('v_lshlrev_b32 v%d, 3, v%d' % (t1, t1))
    a('v_add_u32 v%d, s30, v%d' % (t1, t1))
    a('v_lshl_add_u32 v%d, v%d, 6, v%d' % (tra, t0, t1))
    a('v_and_b32 v%d, 1, v%d' % (t0, t0))
    a('v_lshl_add_u32 v%d, v%d, 6, v%d' % (trb, t0, t1))
    a('s_mul_i32 s30, s24, %d' % (2 * PITCH))
    a('s_add_u32 s30, s30, %d' % (HB + YO))
    a('v_mul_u32_u24 v%d, 72, v%d' % (t0, g))
    a('v_add_u32 v%d, v%d, v%d' % (t0, t0, n))
    a('v_lshlrev_b32 v%d, 1, v%d' % (t0, t0))
    a('v_add_u32 v%d, s30, v%d' % (ya0, t0))
    a('s_add_u32 s30, s30, %d' % (576 - 108))
    a('v_sub_u32 v%d, s30, v%d' % (ya1, t0))
    a('s_waitcnt vmcnt(0)')
    a('ds_write_b128 v%d, %s offset:%d' % (xa, vr(X, 4), XB))
    a('ds_write_b128 v%d, %s offset:%d' % (xa, vr(X + 4, 4), XB + 512))
    a('ds_write_b32 v%d, v%d offset:%d' % (xb, X + 8, XB + 1024))
    AF = V.get(16, 4)
    for rr in range(2):
        for mt in range(2):
            b = AF + 8 * rr + 4 * mt
            a('ds_read_b64_tr_b16 %s, v%d offset:%d' % (vr(b, 2), tra, XB + rr * 1152 + 32 * mt))
            a('ds_read_b64_tr_b16 %s, v%d offset:%d' % (vr(b + 2, 2), trb, XB + rr * 1152 + 32 * mt + 1024))
    sm = V.get(); zz = V.get()
    a('s_mov_b32 s30, 0x3f803f80')
    a('v_dot2_f32_bf16 v%d, v%d, s30, 0' % (sm, X))
    a('v_dot2_f32_bf16 v%d, v%d, v%d, 0' % (zz, X, GW))
    for i in range(1, 9):
        a('v_dot2_f32_bf16 v%d, v%d, s30, v%d' % (sm, X + i, sm))
        a('v_dot2_f32_bf16 v%d, v%d, v%d, v%d' % (zz, X + i, GW + i, zz))
    def allred(regs):
        for sh in (8, 4, 2, 1):
            for x in regs:
                a('v_add_f32 v%d, v%d, v%d row_ror:%d row_mask:0xf bank_mask:0xf' % (x, x, x, sh))
        tmps = [t0, t1, t2]
        for x, t in zip(regs, tmps): a('v_mov_b32 v%d, v%d' % (t, x))
        for x, t in zip(regs, tmps): a('v_permlane16_swap_b32 v%d, v%d' % (x, t))
        for x, t in zip(regs, tmps): a('v_add_f32 v%d, v%d, v%d' % (x, x, t))
    DRE = V.get(16, 4); DIM = V.get(16, 4)
    a('s_waitcnt lgkmcnt(0)')
    for rr in range(2):
        for mt in range(2):
            o = 8 * rr + 4 * mt
            a('%s %s, %s, %s, 0' % (MFMA, vr(DRE + o, 4), vr(AF + o, 4), vr(BC, 4)))
            a('%s %s, %s, %s, 0' % (MFMA, vr(DIM + o, 4), vr(AF + o, 4), vr(BS, 4)))
    allred([sm, zz])
    XF = V.get(18, 2)
    for i in range(9):
        a('v_lshlrev_b32 v%d, 16, v%d' % (XF + 2 * i, X + i))
        a('v_and_b32 v%d, 0xffff0000, v%d' % (XF + 2 * i + 1, X + i))
    a('v_mul_f32 v%d, %s, v%d' % (sm, flit(-1.0 / 576), sm))
    sq = V.get(); sq2 = V.get()
    for i in range(18):
        a('v_add_f32 v%d, v%d, v%d' % (XF + i, XF + i, sm))
    a('v_mul_f32 v%d, v%d, v%d' % (sq, XF, XF))
    a('v_mul_f32 v%d, v%d, v%d' % (sq2, XF + 1, XF + 1))
    for i in range(2, 18):
        a('v_fmac_f32 v%d, v%d, v%d' % (sq if i % 2 == 0 else sq2, XF + i, XF + i))
    a('v_add_f32 v%d, v%d, v%d' % (sq, sq, sq2))
    TR = V.get(8, 4); TI = V.get(8, 4); pr = V.get(2); pi = V.get(2)
    for rr in range(2):
        for p in range(4):
            for e in range(2):
                j = 2 * p + e
                a('v_mul_f32 v%d, v%d, v%d' % (pr + e, DRE + 8 * rr + j, TC + j))
                a('v_mul_f32 v%d, v%d, v%d' % (pi + e, DIM + 8 * rr + j, TC + j))
                a('v_fmac_f32 v%d, v%d, v%d' % (pr + e, DIM + 8 * rr + j, TS + j))
                a('v_fma_f32 v%d, -v%d, v%d, v%d' % (pi + e, DRE + 8 * rr + j, TS + j, pi + e))
            a('v_cvt_pk_bf16_f32 v%d, v%d, v%d' % (TR + 4 * rr + p, pr, pr + 1))
            a('v_cvt_pk_bf16_f32 v%d, v%d, v%d' % (TI + 4 * rr + p, pi, pi + 1))
    for rr in range(2):
        tr = vr(TR + 4 * rr, 4); ti = vr(TI + 4 * rr, 4)
        o = 8 * rr
        a('%s %s, %s, %s, 0' % (MFMA, vr(DRE + o, 4), vr(C0, 4), tr))
        a('%s %s, %s, %s, 0' % (MFMA, vr(DIM + o, 4), vr(C0, 4), ti))
        a('%s %s, %s, %s, 0' % (MFMA, vr(DRE + o + 4, 4), vr(C1, 4), tr))
        a('%s %s, %s, %s, 0' % (MFMA, vr(DIM + o + 4, 4), vr(NC1, 4), ti))
        a('%s %s, %s, %s, %s' % (MFMA, vr(DRE + o, 4), vr(S0, 4), ti, vr(DRE + o, 4)))
        a('%s %s, %s, %s, %s' % (MFMA, vr(DIM + o, 4), vr(NS0, 4), tr, vr(DIM + o, 4)))
        a('%s %s, %s, %s, %s' % (MFMA, vr(DRE + o + 4, 4), vr(S1, 4), ti, vr(DRE + o + 4, 4)))
        a('%s %s, %s, %s, %s' % (MFMA, vr(DIM + o + 4, 4), vr(S1, 4), tr, vr(DIM + o + 4, 4)))
    allred([sq])
    a('v_mov_b32 v%d, %s' % (t0, flit(1e-5)))
    a('v_fmac_f32 v%d, %s, v%d' % (t0, flit(1.0 / 576), sq))
    a('v_rsq_f32 v%d, v%d' % (sq, t0))
    a('v_mul_f32 v%d, %s, v%d' % (zz, flit(-1.4426950408889634), zz))
    a('v_exp_f32 v%d, v%d' % (zz, zz))
    for i in range(18):
        a('v_mul_f32 v%d, v%d, v%d' % (XF + i, XF + i, sq))
    a('v_add_f32 v%d, 1.0, v%d' % (zz, zz))
    a('v_rcp_f32 v%d, v%d' % (zz, zz))
    for i in range(9):
        a('v_cvt_pk_bf16_f32 v%d, v%d, v%d' % (X + i, XF + 2 * i, XF + 2 * i + 1))
    a('ds_write_b128 v%d, %s offset:%d' % (ha, vr(X, 4), HB))
    a('ds_write_b128 v%d, %s offset:%d' % (ha, vr(X + 4, 4), HB + 512))
    a('ds_write_b32 v%d, v%d offset:%d' % (hb, X + 8, HB + 1024))
    a('v_lshlrev_b32 v%d, 2, v%d' % (t0, vs))
    a('v_cmp_eq_u32 vcc, 0, v%d' % q)
    a('s_and_saveexec_b64 s[30:31], vcc')
    a('v_sub_f32 v%d, 1.0, v%d' % (t1, zz))
    a('v_mul_f32 v%d, %s, v%d' % (zz, flit(2.0 / (S * D)), zz))
    a('s_mov_b32 s36, 8192')
    a('buffer_store_dword v%d, v%d, s[32:35], 0 offen' % (t1, t0))
    a('buffer_store_dword v%d, v%d, s[32:35], s36 offen' % (zz, t0))
    a('s_mov_b64 exec, s[30:31]')
    for rr in range(2):
        for part, DD in ((0, DRE), (1, DIM)):
            for mt in range(2):
                o = DD + 8 * rr + 4 * mt
                pk = TR if mt == 0 else TI
                pk = pk + 2 * (2 * rr + part)
                a('v_cvt_pk_bf16_f32 v%d, v%d, v%d' % (pk, o, o + 1))
                a('v_cvt_pk_bf16_f32 v%d, v%d, v%d' % (pk + 1, o + 2, o + 3))
                for i in range(4):
                    off = rr * PITCH + part * 608 + (36 * i if mt == 0 else 108 - 36 * i)
                    a('%s v%d, v%d offset:%d' % ('ds_write_b16' if i % 2 == 0 else 'ds_write_b16_d16_hi',
                                                 ya0 if mt == 0 else ya1, pk + i // 2, off))
    la_h = V.get(); la_y = V.get(); go_h = V.get(); go_y = V.get(3)
    a('v_bfe_u32 v%d, v%d, 2, 2' % (t0, lane))
    a('v_mul_u32_u24 v%d, %d, v%d' % (t0, PITCH, t0))
    a('v_and_b32 v%d, 3, v%d' % (t1, lane))
    a('s_lshl_b32 s30, s24, 7')
    a('s_add_u32 s30, s30, %d' % HB)
    a('v_add_u32 v%d, s30, v%d' % (t0, t0))
    a('v_lshl_add_u32 v%d, v%d, 3, v%d' % (la_y, t1, t0))
    a('v_lshl_add_u32 v%d, v%d, 5, v%d' % (la_y, g, la_y))
    a('v_lshl_add_u32 v%d, v%d, 4, v%d' % (la_h, t1, t0))
    a('v_lshrrev_b32 v%d, 1, v%d' % (t1, g))
    a('v_lshl_add_u32 v%d, v%d, 6, v%d' % (la_h, t1, la_h))
    a('v_and_b32 v%d, 1, v%d' % (t1, g))
    a('v_lshl_add_u32 v%d, v%d, 3, v%d' % (la_h, t1, la_h))
    a('v_lshlrev_b32 v%d, 10, v%d' % (t0, g))
    a('v_lshl_add_u32 v%d, v%d, 4, v%d' % (go_h, n, t0))
    a('s_mul_i32 s36, s25, 36864')
    a('s_lshl_b32 s37, s26, 8')
    a('s_add_u32 s36, s36, s37')
    a('s_lshl_b32 s38, s24, 12')
    a('s_add_u32 s36, s36, s38')
    a('s_add_u32 s38, s36, 16384')
    a('s_add_u32 s39, s36, 32768')
    a('s_lshl_b32 s40, s25, 10')
    a('s_add_u32 s40, s40, s37')
    a('s_lshl_b32 s41, s24, 6')
    for ii, add in enumerate((0, 256, 448)):
        a('s_add_u32 s42, s41, %d' % add)
        a('v_add_u32 v%d, s42, v%d' % (t0, lane))
        a('v_cmp_le_u32 vcc, 304, v%d' % t0)
        a('v_subrev_u32 v%d, 304, v%d' % (t1, t0))
        a('v_cndmask_b32 v%d, v%d, v%d, vcc' % (t0, t0, t1))
        a('v_cndmask_b32 v%d, 0, 8, vcc' % t1)
        a('v_and_or_b32 v%d, v%d, 7, v%d' % (t1, t0, t1))
        a('v_lshrrev_b32 v%d, 3, v%d' % (t0, t0))
        a('v_lshlrev_b32 v%d, 16, v%d' % (t0, t0))
        a('v_lshl_add_u32 v%d, v%d, 4, v%d' % (go_y + ii, t1, t0))
    a('s_waitcnt lgkmcnt(0)')
    a('s_barrier')
    O = V.get(20, 4)
    def rd(dst, addr, off):
        a('ds_read_b64_tr_b16 %s, v%d offset:%d' % (vr(dst, 2), addr, off))
        a('ds_read_b64_tr_b16 %s, v%d offset:%d' % (vr(dst + 2, 2), addr, off + 4 * PITCH))
    rd(O, la_h, 0); rd(O + 4, la_h, 512); rd(O + 8, la_y, YO); rd(O + 12, la_y, YO + 512)
    a('s_waitcnt lgkmcnt(6)')
    a('buffer_store_dwordx4 %s, v%d, s[12:15], s36 offen' % (vr(O, 4), go_h))
    a('s_waitcnt lgkmcnt(4)')
    a('buffer_store_dwordx4 %s, v%d, s[12:15], s38 offen' % (vr(O + 4, 4), go_h))
    a('s_waitcnt lgkmcnt(2)')
    a('buffer_store_dwordx4 %s, v%d, s[16:19], s40 offen' % (vr(O + 8, 4), go_y))
    a('s_waitcnt lgkmcnt(0)')
    a('buffer_store_dwordx4 %s, v%d, s[16:19], s40 offen' % (vr(O + 12, 4), go_y + 1))
    a('s_cmp_eq_u32 s24, 3')
    a('s_cbranch_scc1 %s_end' % name)
    a('s_cmp_eq_u32 s24, 0')
    a('s_cbranch_scc1 %s_h8' % name)
    rd(O + 16, la_y, YO + 7 * 128)
    a('s_waitcnt lgkmcnt(0)')
    a('buffer_store_dwordx4 %s, v%d, s[16:19], s40 offen' % (vr(O + 16, 4), go_y + 2))
    a('s_endpgm')
    a.label('%s_h8' % name)
    rd(O + 16, la_h, 1024)
    a('s_waitcnt lgkmcnt(0)')
    a('buffer_store_dwordx4 %s, v%d, s[12:15], s39 offen' % (vr(O + 16, 4), go_h))
    a.label('%s_end' % name)
    a('s_endpgm')
    nv = (V.hi + 7) // 8 * 8
    return dict(name=name, text=kernel_header(name) + a.finish(), desc=kernel_desc(name, nv, nv),
                grid=256, block=256, lds=PREP_LDS)
```

```python
import sys
sys.path.insert(0, 'gen')
from build import *
from prep import gen_prep
from k2 import gen_k2
from fft import gen_fft
from k3 import gen_k3, gen_final
ks = [gen_prep('prep_kernel'), gen_k2('k2_kernel', gen_fft), gen_k3('k3_kernel'), gen_final('fin_kernel')]
assemble(ks, sys.argv[1] if len(sys.argv) > 1 else 't2.s')
for k in ks: print(k['name'], k['lds'], k['desc'].split('\n')[2:5])
```

```python
import sys
sys.path.insert(0, 'gen')
from build import *
from prep import gen_prep
from k2 import gen_k2
from fft import gen_fft
from k3 import gen_k3, gen_final
p, k2, k3, f = gen_prep('prep_kernel'), gen_k2('k2_kernel', gen_fft), gen_k3('k3_kernel'), gen_final('fin_kernel')
e = dict(name='e_kernel', text=kernel_header('e_kernel') + 's_endpgm\n', desc=kernel_desc('e_kernel', 8, 8), grid=1, block=64, lds=0)
assemble([p, k2, k3, f, e, e, e, e], 'v1.s')
assemble([p, p, k2, k3, f], 'v2.s')
assemble([p, k2, k2, k3, f], 'v3.s')
assemble([p, k2, k3, k3, f], 'v4.s')
assemble([p, k2, k3, f, f], 'v5.s')
assemble([p, k2, k3, f], 'v0.s')
```
